```python
import torch

def _softmax(x, axis=-1):
    return torch.softmax(x, dim=axis)
def _gelu(x):
    return torch.nn.functional.gelu(x, approximate="tanh")
def _silu(x):
    return torch.nn.functional.silu(x)
def _sigmoid(x):
    return torch.sigmoid(x)
def _layernorm(x, axis=-1, eps=1e-5):
    m = x.mean(dim=axis, keepdim=True)
    v = x.var(dim=axis, keepdim=True, unbiased=False)
    return (x - m) / torch.sqrt(v + eps)
def _scatter_add(tgt, idx, src, axis=0):
    return tgt.clone().index_add_(axis, idx, src)
def _segment_sum(src, seg, n):
    out = torch.zeros((n,) + src.shape[1:], dtype=src.dtype)
    return out.index_add_(0, seg, src)
def _pad(x, pw):
    flat = tuple(v for pair in reversed(pw) for v in pair)
    return torch.nn.functional.pad(x, flat)

kernel_name = 'recurrent_scan__ssm_conv_s5__mixer_s_mlp__prompt'

def setup_inputs():

    _w = (lambda a: (lambda t: t.to(torch.bfloat16) if t.is_floating_point() else t)(torch.as_tensor(a)))
    def _A_setup():
        B, S, D = 1, 2048, 640
        P = D
        Lambda_re = -0.5 * (lambda _x: torch.exp(torch.as_tensor(_x)))((lambda *s: torch.randn(*s, dtype=torch.bfloat16) * 0.2)(P))
        Lambda_im = (lambda *s: torch.randn(*s, dtype=torch.bfloat16) * 0.4)(P) * 1.0
        B_re = (lambda *s: torch.randn(*s, dtype=torch.bfloat16) * 0.2)(P, D) * (D ** -0.5)
        B_im = (lambda *s: torch.randn(*s, dtype=torch.bfloat16) * 0.2)(P, D) * (D ** -0.5)
        C_re = (lambda *s: torch.randn(*s, dtype=torch.bfloat16) * 0.2)(D, P) * (P ** -0.5)
        C_im = (lambda *s: torch.randn(*s, dtype=torch.bfloat16) * 0.2)(D, P) * (P ** -0.5)
        log_dt = (lambda *s: torch.randn(*s, dtype=torch.bfloat16) * 0.2)(P) * 0.3 - 2.0
        Dskip = (lambda *s: torch.randn(*s, dtype=torch.bfloat16) * 0.05)(D)
        return {
            "x": _w((lambda *s: torch.randn(*s, dtype=torch.bfloat16) * 0.05)(B, S, D)),
            "Lambda_re": _w(Lambda_re),
            "Lambda_im": _w(Lambda_im),
            "B_re": _w(B_re),
            "B_im": _w(B_im),
            "C_re": _w(C_re),
            "C_im": _w(C_im),
            "log_dt": _w(log_dt),
            "Dskip": _w(Dskip),
        }
    _A_in = _A_setup()

    def _B_setup():
        B, S, D, F = 1, 2048, 640, 1536
        return {
            "x":  _w((lambda *s: torch.randn(*s, dtype=torch.bfloat16) * 0.05)(B, S, D)),
            "w1": _w((lambda *s: torch.randn(*s, dtype=torch.bfloat16) * 3.2)(D, D) * (D ** -0.5)),
            "w2": _w((lambda *s: torch.randn(*s, dtype=torch.bfloat16) * 3.2)(D, D) * (D ** -0.5)),
            "w3": _w((lambda *s: torch.randn(*s, dtype=torch.bfloat16) * 3.2)(D, F) * (D ** -0.5)),
            "w4": _w((lambda *s: torch.randn(*s, dtype=torch.bfloat16) * 1.6)(F, D) * (F ** -0.5)),
        }
    _B_in = _B_setup()

    return {
        "A_x": _A_in["x"],
        "A_Lambda_re": _A_in["Lambda_re"],
        "A_Lambda_im": _A_in["Lambda_im"],
        "A_B_re": _A_in["B_re"],
        "A_B_im": _A_in["B_im"],
        "A_C_re": _A_in["C_re"],
        "A_C_im": _A_in["C_im"],
        "A_log_dt": _A_in["log_dt"],
        "A_Dskip": _A_in["Dskip"],
        "B_x": _B_in["x"],
        "B_w1": _B_in["w1"],
        "B_w2": _B_in["w2"],
        "B_w3": _B_in["w3"],
        "B_w4": _B_in["w4"],
    }

def reference(A_x, A_Lambda_re, A_Lambda_im, A_B_re, A_B_im, A_C_re, A_C_im, A_log_dt, A_Dskip, B_x, B_w1, B_w2, B_w3, B_w4):
    def _A_ref(x, Lambda_re, Lambda_im, B_re, B_im, C_re, C_im, log_dt, Dskip):
        Bsz, L, H = x.shape
        Lam = Lambda_re + 1j * Lambda_im
        Bmat = B_re + 1j * B_im
        Cmat = C_re + 1j * C_im
        dt = torch.exp(log_dt)
        Lam_bar = torch.exp(dt * Lam)
        B_bar = ((Lam_bar - 1.0) / Lam)[:, None] * Bmat
        Bu = torch.einsum("bld,pd->blp", x + 0j, B_bar)
        h = torch.zeros_like(Bu[:, 0, :])
        hs = []
        for t in range(L):
            h = Lam_bar[None, :] * h + Bu[:, t, :]
            hs.append(h)
        hseq = torch.stack(hs, 1)
        y = 2.0 * torch.einsum("blp,dp->bld", hseq, Cmat).real + x * Dskip[None, None, :]
        return y

    def _B_ref(x, w1, w2, w3, w4):
        B, S, D = x.shape
        h = _gelu(_layernorm(x, axis=-1) @ w1)
        c = D // 4
        g0 = _pad(h[:, :, 0*c:1*c], ((0, 0), (1, 0), (0, 0)))[:, :S, :]
        g1 = _pad(h[:, :, 1*c:2*c], ((0, 0), (0, 1), (0, 0)))[:, 1:, :]
        g2 = _pad(h[:, :, 2*c:3*c], ((0, 0), (2, 0), (0, 0)))[:, :S, :]
        g3 = _pad(h[:, :, 3*c:   ], ((0, 0), (0, 2), (0, 0)))[:, 2:, :]
        hs = torch.concatenate([g0, g1, g2, g3], axis=-1) @ w2
        x1 = x + hs
        h2 = _gelu(_layernorm(x1, axis=-1) @ w3) @ w4
        return x1 + h2

    x = A_x
    xn = _layernorm(x, axis=-1)
    s = _A_ref(xn, A_Lambda_re, A_Lambda_im, A_B_re, A_B_im, A_C_re, A_C_im, A_log_dt, A_Dskip)
    g = _silu(_B_ref(xn, B_w1, B_w2, B_w3, B_w4))
    return x + s * g
```

```python
import sys
L=2048; D=640; F=1536
HDR=open('recurrent_scan__ssm_conv_s5__mixer_s_mlp__prompt.s.ref').read().split("; Override launch geometry")[0]
KA={'x':0,'lre':8,'lim':16,'bre':24,'bim':32,'cre':40,'cim':48,'ldt':56,'dsk':64,'w1':80,'w2':88,'w3':96,'w4':104,'out':112,'dbg':120,'ws':128}
off=0
WS={}
def alloc(name,nbytes):
    global off
    WS[name]=off; off+= (nbytes+4095)//4096*4096
alloc('XN',L*D*2); alloc('XN2',L*D*2); alloc('W1T',D*D*2); alloc('W2T',D*D*2); alloc('W3T',D*F*2); alloc('W4T',D*F*2)
alloc('U',L*2*D*4); alloc('H',L*2*D*2); alloc('Y',L*D*4); alloc('P1',L*D*4); alloc('G',L*D*2); alloc('P2',L*D*4)
alloc('X1',L*D*2); alloc('X1N',L*D*2); alloc('P3',L*F*4); alloc('HM',L*F*2); alloc('P4',L*D*4)
launches=[]; code=[]; descs=[]
def kernel(name,grid,block,body,vg=128,lds=0):
    launches.append(f"; @launch kernel={name}_kernel grid=({grid},1,1) block=({block},1,1) lds={lds}")
    code.append(f".globl {name}_kernel\n.p2align 8\n.type {name}_kernel,@function\n{name}_kernel:\n  s_cmp_ge_u32 s2, {grid}\n  s_cbranch_scc1 L_end_{name}\n{body}\nL_end_{name}:\n  s_endpgm\n")
    descs.append(f""".p2align 6
.amdhsa_kernel {name}_kernel
  .amdhsa_next_free_vgpr {vg}
  .amdhsa_next_free_sgpr 100
  .amdhsa_accum_offset {vg}
  .amdhsa_group_segment_fixed_size 0
  .amdhsa_kernarg_size 136
  .amdhsa_user_sgpr_count 2
  .amdhsa_user_sgpr_kernarg_segment_ptr 1
  .amdhsa_system_sgpr_workgroup_id_x 1
  .amdhsa_float_denorm_mode_32 3
.end_amdhsa_kernel
""")
def srd(sd,src,offset,nbytes):
    return f"""  s_load_dwordx2 s[{sd}:{sd+1}], s[0:1], {KA[src]}
  s_waitcnt lgkmcnt(0)
  s_add_u32 s{sd}, s{sd}, {offset}
  s_addc_u32 s{sd+1}, s{sd+1}, 0
  s_mov_b32 s{sd+2}, {nbytes}
  s_mov_b32 s{sd+3}, 0x00020000
"""
def wsrd(sd,name,nbytes): return srd(sd,'ws',WS[name],nbytes)
def rbf(dst,src,tmp):
    return f"  v_cvt_pk_bf16_f32 v{dst}, v{src}, v{src}\n"
def wavesum(v,t,sdst):
    s=""
    for o in (0x041F,0x081F,0x101F,0x201F,0x401F):
        s+=f"  ds_swizzle_b32 v{t}, v{v} offset:{o}\n  s_waitcnt lgkmcnt(0)\n  v_add_f32 v{v}, v{v}, v{t}\n"
    s+=f"  s_nop 1\n  v_readlane_b32 s{sdst}, v{v}, 0\n  v_readlane_b32 s{sdst+1}, v{v}, 32\n  s_nop 3\n  v_mov_b32 v{t}, s{sdst+1}\n  v_add_f32 v{v}, s{sdst}, v{t}\n"
    return s
def ln10(b):
    s=f"  v_mov_b32 v40, 0\n"
    for i in range(10): s+=f"  v_add_f32 v40, v40, v{b+i}\n"
    s+=wavesum(40,41,60)
    s+=f"  v_mul_f32 v40, {1.0/640}, v40\n" .replace(str(1.0/640), "0x3acccccd")
    for i in range(10): s+=f"  v_sub_f32 v{b+i}, v{b+i}, v40\n"
    s+=f"  v_mov_b32 v42, 0\n"
    for i in range(10): s+=f"  v_fmac_f32 v42, v{b+i}, v{b+i}\n"
    s+=wavesum(42,41,60)
    s+=f"  v_mul_f32 v42, 0x3acccccd, v42\n  v_add_f32 v42, 0x3727c5ac, v42\n  v_rsq_f32 v42, v42\n  s_nop 1\n"
    for i in range(10): s+=f"  v_mul_f32 v{b+i}, v{b+i}, v42\n"
    return s
def unpack5(src,dst):
    s=""
    for j in range(5):
        s+=f"  v_lshlrev_b32 v{dst+2*j}, 16, v{src+j}\n  v_and_b32 v{dst+2*j+1}, 0xffff0000, v{src+j}\n"
    return s
def pack5(src,dst):
    s=""
    for j in range(5): s+=f"  v_cvt_pk_bf16_f32 v{dst+j}, v{src+2*j}, v{src+2*j+1}\n"
    return s
b=srd(8,'x',0,L*D*2)+wsrd(12,'XN',L*D*2)+wsrd(16,'XN2',L*D*2)
b+="""  v_lshrrev_b32 v1, 6, v0
  v_and_b32 v2, 63, v0
  s_lshl_b32 s3, s2, 2
  v_add_u32 v1, s3, v1
  s_movk_i32 s4, 1280
  v_mul_lo_u32 v1, v1, s4
  v_lshl_add_u32 v1, v2, 2, v1
"""
for j in range(5): b+=f"  buffer_load_dword v{10+j}, v1, s[8:11], 0 offen offset:{256*j}\n"
b+="  s_waitcnt vmcnt(0)\n"+unpack5(10,20)+ln10(20)+pack5(20,10)
for j in range(5): b+=f"  buffer_store_dword v{10+j}, v1, s[12:15], 0 offen offset:{256*j}\n"
b+=unpack5(10,20)+ln10(20)+pack5(20,50)
for j in range(5): b+=f"  buffer_store_dword v{50+j}, v1, s[16:19], 0 offen offset:{256*j}\n"
b+="  s_waitcnt vmcnt(0)\n"
kernel('ln12',L//4,256,b)
def transpose(name,src,dst,K,N):
    b=srd(8,src,0,K*N*2)+wsrd(12,dst,K*N*2)
    magic=(1<<32)//K+1
    b+=f"""  s_lshl_b32 s3, s2, 8
  v_add_u32 v1, s3, v0
  s_mov_b32 s4, {magic}
  v_mul_hi_u32 v2, v1, s4
  s_mov_b32 s5, {K}
  v_mul_lo_u32 v3, v2, s5
  v_sub_u32 v3, v1, v3
  s_mov_b32 s5, {N}
  v_mul_lo_u32 v4, v3, s5
  v_add_u32 v4, v4, v2
  v_lshlrev_b32 v4, 1, v4
  v_lshlrev_b32 v1, 1, v1
  buffer_load_ushort v5, v4, s[8:11], 0 offen
  s_waitcnt vmcnt(0)
  buffer_store_short v5, v1, s[12:15], 0 offen
  s_waitcnt vmcnt(0)
"""
    kernel(name,K*N//256,256,b)
transpose('t1','w1','W1T',D,D); transpose('t2','w2','W2T',D,D); transpose('t3','w3','W3T',D,F); transpose('t4','w4','W4T',F,D)
def gemm(name,segs,N,Cname,ldc,coff):
    ntn=N//32
    magic=(1<<32)//ntn+1
    b=f"""  s_mov_b32 s4, {magic}
  s_mul_hi_u32 s5, s2, s4
  s_mul_i32 s6, s5, {ntn}
  s_sub_u32 s6, s2, s6
  s_lshl_b32 s5, s5, 5
  s_lshl_b32 s6, s6, 5
  v_and_b32 v1, 15, v0
  v_lshrrev_b32 v2, 4, v0
"""
    for i in range(16): b+=f"  v_mov_b32 v{40+i}, 0\n"
    for si,(As,lda,akoff,Bs,ldb,K) in enumerate(segs):
        b+=As(8)+Bs(12)
        b+=f"""  v_add_u32 v3, s5, v1
  s_mov_b32 s7, {lda}
  v_mul_lo_u32 v3, v3, s7
  v_lshl_add_u32 v3, v2, 4, v3
  v_add_u32 v3, {akoff}, v3
  v_add_u32 v4, {16*lda}, v3
  v_add_u32 v5, s6, v1
  s_mov_b32 s7, {ldb}
  v_mul_lo_u32 v5, v5, s7
  v_lshl_add_u32 v5, v2, 4, v5
  v_add_u32 v6, {16*ldb}, v5
  s_mov_b32 s20, 0
L_{name}_{si}:
  buffer_load_dwordx4 v[8:11], v3, s[8:11], s20 offen
  buffer_load_dwordx4 v[12:15], v4, s[8:11], s20 offen
  buffer_load_dwordx4 v[16:19], v5, s[12:15], s20 offen
  buffer_load_dwordx4 v[20:23], v6, s[12:15], s20 offen
  s_waitcnt vmcnt(0)
  v_mfma_f32_16x16x32_bf16 v[40:43], v[8:11], v[16:19], v[40:43]
  v_mfma_f32_16x16x32_bf16 v[44:47], v[8:11], v[20:23], v[44:47]
  v_mfma_f32_16x16x32_bf16 v[48:51], v[12:15], v[16:19], v[48:51]
  v_mfma_f32_16x16x32_bf16 v[52:55], v[12:15], v[20:23], v[52:55]
  s_add_u32 s20, s20, 64
  s_cmp_lt_u32 s20, {K*2}
  s_cbranch_scc1 L_{name}_{si}
"""
    b+="  s_nop 15\n"+wsrd(16,Cname,L*ldc*4)
    b+=f"""  v_lshlrev_b32 v3, 2, v2
  v_add_u32 v3, s5, v3
  s_mov_b32 s7, {ldc*4}
  v_mul_lo_u32 v3, v3, s7
  v_add_u32 v4, s6, v1
  v_lshl_add_u32 v3, v4, 2, v3
  v_add_u32 v3, {coff*4}, v3
"""
    for ti,(mo,no) in enumerate(((0,0),(0,16),(16,0),(16,16))):
        for r in range(4):
            b+=f"  v_add_u32 v4, {(mo+r)*ldc*4+no*4}, v3\n  buffer_store_dword v{40+4*ti+r}, v4, s[16:19], 0 offen\n"
    b+="  s_waitcnt vmcnt(0)\n"
    kernel(name,(L//32)*ntn,64,b)
W=lambda n,nb:(lambda sd: wsrd(sd,n,nb)); I=lambda n,nb:(lambda sd: srd(sd,n,0,nb))
gemm('gure',[(W('XN',L*D*2),1280,0,I('bre',D*D*2),1280,D)],D,'U',1280,0)
gemm('guim',[(W('XN',L*D*2),1280,0,I('bim',D*D*2),1280,D)],D,'U',1280,640)
LOG2E="0x3fb8aa3b"
b=srd(8,'lre',0,1280)+srd(12,'lim',0,1280)+srd(16,'ldt',0,1280)+wsrd(20,'U',L*1280*4)+wsrd(24,'H',L*1280*2)
b+=f"""  s_lshl_b32 s3, s2, 6
  v_add_u32 v1, s3, v0
  v_lshlrev_b32 v2, 1, v1
  buffer_load_ushort v3, v2, s[8:11], 0 offen
  buffer_load_ushort v4, v2, s[12:15], 0 offen
  buffer_load_ushort v5, v2, s[16:19], 0 offen
  s_waitcnt vmcnt(0)
  v_lshlrev_b32 v3, 16, v3
  v_lshlrev_b32 v4, 16, v4
  v_lshlrev_b32 v5, 16, v5
  v_mul_f32 v5, {LOG2E}, v5
  v_exp_f32 v5, v5
  s_nop 1
  v_cvt_pk_bf16_f32 v5, v5, v5
  v_lshlrev_b32 v5, 16, v5
  v_mul_f32 v6, v5, v3
  v_mul_f32 v7, v5, v4
  v_mul_f32 v6, {LOG2E}, v6
  v_exp_f32 v6, v6
  v_mul_f32 v7, 0.15915494309189535, v7
  v_fract_f32 v7, v7
  v_cos_f32 v8, v7
  v_sin_f32 v9, v7
  s_nop 1
  v_mul_f32 v8, v8, v6
  v_mul_f32 v9, v9, v6
  v_subrev_f32 v10, 1.0, v8
  v_mul_f32 v11, v3, v3
  v_fmac_f32 v11, v4, v4
  v_rcp_f32 v11, v11
  v_mul_f32 v12, v10, v3
  v_fmac_f32 v12, v9, v4
  v_mul_f32 v13, v9, v3
  v_fma_f32 v13, -v10, v4, v13
  v_mul_f32 v12, v12, v11
  v_mul_f32 v13, v13, v11
  v_mov_b32 v14, 0
  v_mov_b32 v15, 0
  v_lshlrev_b32 v16, 2, v1
  s_mov_b32 s30, 0
  s_mov_b32 s31, 0
L_scan:
"""
for i in range(8): b+=f"  buffer_load_dword v{20+2*i}, v16, s[20:23], s30 offen\n  buffer_load_dword v{21+2*i}, v16, s[20:23], s30 offen offset:2560\n  s_add_u32 s30, s30, 5120\n"
b+="  s_waitcnt vmcnt(0)\n"
for i in range(8):
    ur,ui=20+2*i,21+2*i
    b+=f"""  v_mul_f32 v17, v12, v{ur}
  v_fma_f32 v17, -v13, v{ui}, v17
  v_mul_f32 v18, v12, v{ui}
  v_fmac_f32 v18, v13, v{ur}
  v_fmac_f32 v17, v8, v14
  v_fma_f32 v17, -v9, v15, v17
  v_fmac_f32 v18, v8, v15
  v_fmac_f32 v18, v9, v14
  v_mov_b32 v14, v17
  v_mov_b32 v15, v18
  v_sub_f32 v19, 0, v18
  v_cvt_pk_bf16_f32 v40, v17, v19
  buffer_store_short v40, v2, s[24:27], s31 offen
  buffer_store_short_d16_hi v40, v2, s[24:27], s31 offen offset:1280
  s_add_u32 s31, s31, 2560
"""
b+=f"  s_cmp_lt_u32 s30, {L*5120}\n  s_cbranch_scc1 L_scan\n  s_waitcnt vmcnt(0)\n"
kernel('scan',10,64,b)
gemm('gy',[(W('H',L*1280*2),2560,0,I('cre',D*D*2),1280,D),(W('H',L*1280*2),2560,1280,I('cim',D*D*2),1280,D)],D,'Y',640,0)
gemm('g1',[(W('XN2',L*D*2),1280,0,W('W1T',D*D*2),1280,D)],D,'P1',640,0)
def gelu(v,t):
    return f"""  v_mul_f32 v{t}, v{v}, v{v}
  v_mul_f32 v{t}, 0x3d372713, v{t}
  v_fma_f32 v{t}, v{t}, v{v}, v{v}
  v_mul_f32 v{t}, 0xc0135761, v{t}
  v_exp_f32 v{t}, v{t}
  s_nop 1
  v_add_f32 v{t}, 1.0, v{t}
  v_rcp_f32 v{t}, v{t}
  s_nop 1
  v_mul_f32 v{v}, v{v}, v{t}
"""
import struct
def fh(x): return "0x%08x"%struct.unpack('<I',struct.pack('<f',x))[0]
assert fh(-2*0.7978845608028654*1.4426950408889634)=="0xc0135761", fh(-2*0.7978845608028654*1.4426950408889634)
assert fh(0.044715)=="0x3d372713"
assert fh(1/640)=="0x3acccccd" and fh(1e-5)=="0x3727c5ac"
magic=(1<<32)//640+1
b=wsrd(8,'P1',L*D*4)+wsrd(12,'G',L*D*2)
b+=f"""  s_lshl_b32 s3, s2, 8
  v_add_u32 v1, s3, v0
  s_mov_b32 s4, {magic}
  v_mul_hi_u32 v2, v1, s4
  v_mul_u32_u24 v3, 640, v2
  v_sub_u32 v3, v1, v3
  v_mov_b32 v4, -1
  v_cmp_le_u32 vcc, 160, v3
  v_cndmask_b32 v4, v4, 1, vcc
  v_mov_b32 v5, -2
  v_cmp_le_u32 vcc, 320, v3
  v_cndmask_b32 v4, v4, v5, vcc
  v_cmp_le_u32 vcc, 480, v3
  v_cndmask_b32 v4, v4, 2, vcc
  v_add_u32 v4, v4, v2
  v_mul_lo_u32 v4, v4, 640
""".replace("v_mul_lo_u32 v4, v4, 640","s_movk_i32 s5, 640\n  v_mul_lo_u32 v4, v4, s5")+f"""  v_add_u32 v4, v4, v3
  v_lshlrev_b32 v4, 2, v4
  buffer_load_dword v6, v4, s[8:11], 0 offen
  s_waitcnt vmcnt(0)
"""+gelu(6,7)+"""  v_cvt_pk_bf16_f32 v6, v6, v6
  v_lshlrev_b32 v1, 1, v1
  buffer_store_short v6, v1, s[12:15], 0 offen
  s_waitcnt vmcnt(0)
"""
kernel('ew1',L*D//256,256,b)
gemm('g2',[(W('G',L*D*2),1280,0,W('W2T',D*D*2),1280,D)],D,'P2',640,0)
b=wsrd(8,'XN',L*D*2)+wsrd(12,'P2',L*D*4)+wsrd(16,'X1',L*D*2)+wsrd(20,'X1N',L*D*2)
b+="""  v_lshrrev_b32 v1, 6, v0
  v_and_b32 v2, 63, v0
  s_lshl_b32 s3, s2, 2
  v_add_u32 v1, s3, v1
  s_movk_i32 s4, 1280
  v_mul_lo_u32 v1, v1, s4
  v_lshl_add_u32 v1, v2, 2, v1
  v_lshlrev_b32 v3, 1, v1
"""
for j in range(5): b+=f"  buffer_load_dword v{10+j}, v1, s[8:11], 0 offen offset:{256*j}\n  buffer_load_dwordx2 v[{30+2*j}:{31+2*j}], v3, s[12:15], 0 offen offset:{512*j}\n"
b+="  s_waitcnt vmcnt(0)\n"+unpack5(10,20)
for i in range(10): b+=f"  v_add_f32 v{20+i}, v{20+i}, v{30+i}\n"
b+=pack5(20,10)
for j in range(5): b+=f"  buffer_store_dword v{10+j}, v1, s[16:19], 0 offen offset:{256*j}\n"
b+=unpack5(10,20)+ln10(20)+pack5(20,50)
for j in range(5): b+=f"  buffer_store_dword v{50+j}, v1, s[20:23], 0 offen offset:{256*j}\n"
b+="  s_waitcnt vmcnt(0)\n"
kernel('ew2',L//4,256,b)
gemm('g3',[(W('X1N',L*D*2),1280,0,W('W3T',D*F*2),1280,D)],F,'P3',F,0)
b=wsrd(8,'P3',L*F*4)+wsrd(12,'HM',L*F*2)
b+="""  s_lshl_b32 s3, s2, 8
  v_add_u32 v1, s3, v0
  v_lshlrev_b32 v4, 2, v1
  buffer_load_dword v6, v4, s[8:11], 0 offen
  s_waitcnt vmcnt(0)
"""+gelu(6,7)+"""  v_cvt_pk_bf16_f32 v6, v6, v6
  v_lshlrev_b32 v1, 1, v1
  buffer_store_short v6, v1, s[12:15], 0 offen
  s_waitcnt vmcnt(0)
"""
kernel('ew3',L*F//256,256,b)
gemm('g4',[(W('HM',L*F*2),F*2,0,W('W4T',D*F*2),F*2,F)],D,'P4',640,0)
b=srd(8,'x',0,L*D*2)+wsrd(12,'XN',L*D*2)+wsrd(16,'X1',L*D*2)+wsrd(20,'Y',L*D*4)+wsrd(24,'P4',L*D*4)+srd(28,'dsk',0,1280)+srd(32,'out',0,L*D*4)
b+=f"""  s_lshl_b32 s3, s2, 8
  v_add_u32 v1, s3, v0
  s_mov_b32 s4, {magic}
  v_mul_hi_u32 v2, v1, s4
  v_mul_u32_u24 v3, 640, v2
  v_sub_u32 v3, v1, v3
  v_lshlrev_b32 v3, 1, v3
  v_lshlrev_b32 v4, 1, v1
  v_lshlrev_b32 v5, 2, v1
  buffer_load_ushort v10, v4, s[8:11], 0 offen
  buffer_load_ushort v11, v4, s[12:15], 0 offen
  buffer_load_ushort v12, v4, s[16:19], 0 offen
  buffer_load_dword v13, v5, s[20:23], 0 offen
  buffer_load_dword v14, v5, s[24:27], 0 offen
  buffer_load_ushort v15, v3, s[28:31], 0 offen
  s_waitcnt vmcnt(0)
  v_lshlrev_b32 v10, 16, v10
  v_lshlrev_b32 v11, 16, v11
  v_lshlrev_b32 v12, 16, v12
  v_lshlrev_b32 v15, 16, v15
  v_add_f32 v12, v12, v14
  v_mul_f32 v16, 0xbfb8aa3b, v12
  v_exp_f32 v16, v16
  s_nop 1
  v_add_f32 v16, 1.0, v16
  v_rcp_f32 v16, v16
  s_nop 1
  v_mul_f32 v12, v12, v16
  v_add_f32 v13, v13, v13
  v_fmac_f32 v13, v11, v15
  v_fmac_f32 v10, v13, v12
  buffer_store_dword v10, v5, s[32:35], 0 offen
  s_waitcnt vmcnt(0)
"""
kernel('fin',L*D//256,256,b)
nextra=int(sys.argv[1]) if len(sys.argv)>1 else 0
for i in range(nextra): kernel(f'e{i}',256,256,"")
print(HDR+"\n".join(launches)+'\n.amdgcn_target "amdgcn-amd-amdhsa--gfx950"\n.text\n'+"\n".join(code)+'.section .rodata,"a"\n'+"".join(descs))
```

```python
import sys,re,subprocess
which=sys.argv[1]; n=int(sys.argv[2]); stride=int(sys.argv[3]); standalone=len(sys.argv)>4
KA={'x':0,'w3':96,'w4':104,'bre':24,'ws':128,'out':112}
body=f""".globl lat_kernel
.p2align 8
.type lat_kernel,@function
lat_kernel:
  s_cmp_ge_u32 s2, 1
  s_cbranch_scc1 L_end_lat
  s_load_dwordx2 s[8:9], s[0:1], {KA[which]}
  s_load_dwordx2 s[4:5], s[0:1], 120
  s_waitcnt lgkmcnt(0)
  s_mov_b32 s10, 1900000
  s_mov_b32 s11, 0x00020000
  s_mov_b32 s12, s4
  s_mov_b32 s13, s5
  s_mov_b32 s14, 256
  s_mov_b32 s15, 0x00020000
  v_mov_b32 v1, 0
  s_mov_b32 s20, 0
  s_memtime s[16:17]
  s_waitcnt lgkmcnt(0)
L_lat:
  buffer_load_dword v2, v1, s[8:11], 0 offen
  s_waitcnt vmcnt(0)
  v_and_b32 v2, 0, v2
  v_add_u32 v1, v1, v2
  v_add_u32 v1, {stride}, v1
  s_add_u32 s20, s20, 1
  s_cmp_lt_u32 s20, {n}
  s_cbranch_scc1 L_lat
  s_memtime s[18:19]
  s_waitcnt lgkmcnt(0)
  s_sub_u32 s18, s18, s16
  v_mov_b32 v3, s18
  v_mov_b32 v4, 0
  buffer_store_dword v3, v4, s[12:15], 0 offen
  s_waitcnt vmcnt(0)
L_end_lat:
  s_endpgm
"""
desc=""".p2align 6
.amdhsa_kernel lat_kernel
  .amdhsa_next_free_vgpr 8
  .amdhsa_next_free_sgpr 32
  .amdhsa_accum_offset 8
  .amdhsa_group_segment_fixed_size 0
  .amdhsa_kernarg_size 136
  .amdhsa_user_sgpr_count 2
  .amdhsa_user_sgpr_kernarg_segment_ptr 1
  .amdhsa_system_sgpr_workgroup_id_x 1
.end_amdhsa_kernel
"""
la="; @launch kernel=lat_kernel grid=(1,1,1) block=(64,1,1) lds=0"
if standalone:
    print(la+'\n.amdgcn_target "amdgcn-amd-amdhsa--gfx950"\n.text\n'+body+'.section .rodata,"a"\n'+desc)
else:
    s=open('naive0.s').read()
    s=s.replace("; @launch kernel=ln12_kernel",la+"\n; @launch kernel=ln12_kernel",1)
    s=s.replace(".text\n",".text\n"+body,1)
    s=s.replace('.section .rodata,"a"\n','.section .rodata,"a"\n'+desc,1)
    print(s)
```

```python
import sys
nkb=int(sys.argv[1]); loop=int(sys.argv[2]); TOT=int(sys.argv[3]); enc=int(sys.argv[4]) if len(sys.argv)>4 else 8
n=nkb*1024//enc
ins=(lambda i: f"  v_add3_u32 v{1+i%8}, v{1+i%8}, v0, v0\n") if enc==8 else (lambda i: f"  v_add_u32 v{1+i%8}, v{1+i%8}, v0\n")
body=f""".globl ic_kernel
.p2align 8
.type ic_kernel,@function
ic_kernel:
  s_cmp_ge_u32 s2, 256
  s_cbranch_scc1 L_end_ic
  s_load_dwordx2 s[8:9], s[0:1], 128
  v_lshrrev_b32 v9, 6, v0
  s_waitcnt lgkmcnt(0)
  s_mov_b32 s10, 0x10000000
  s_mov_b32 s11, 0x00020000
  v_readfirstlane_b32 s23, v9
  s_nop 3
  s_cmp_lt_u32 s23, 4
  s_cbranch_scc1 L_comp
  s_sub_u32 s23, s23, 4
  v_and_b32 v1, 63, v0
  v_lshlrev_b32 v1, 4, v1
  s_and_b32 s20, s2, 7
  s_lshl_b32 s20, s20, 20
  s_add_u32 s20, s20, 0x2000000
  s_lshr_b32 s21, s2, 3
  s_mul_i32 s21, s21, 32768
  s_lshl_b32 s25, s23, 10
  s_add_u32 s26, s21, s25
  s_mov_b32 s27, 0
L_dl:
  s_and_b32 s26, s26, 0xfffff
  s_add_u32 s24, s26, s20
  s_mov_b32 m0, s25
  s_add_u32 s26, s26, 4096
  buffer_load_dwordx4 v1, s[8:11], s24 offen lds
  s_add_u32 s27, s27, 1
  s_waitcnt vmcnt(24)
  s_cmp_lt_u32 s27, {TOT//4}
  s_cbranch_scc1 L_dl
  s_waitcnt vmcnt(0)
  s_endpgm
L_comp:
"""
if loop:
    body+=f"  s_mov_b32 s4, 0\nL_icl:\n"
    for i in range(64): body+=ins(i)
    body+=f"  s_add_u32 s4, s4, 64\n  s_cmp_lt_u32 s4, {n}\n  s_cbranch_scc1 L_icl\n"
else:
    for i in range(n): body+=ins(i)
body+="""L_end_ic:
  s_endpgm
"""
desc=""".p2align 6
.amdhsa_kernel ic_kernel
  .amdhsa_next_free_vgpr 16
  .amdhsa_next_free_sgpr 32
  .amdhsa_accum_offset 16
  .amdhsa_group_segment_fixed_size 0
  .amdhsa_kernarg_size 136
  .amdhsa_user_sgpr_count 2
  .amdhsa_user_sgpr_kernarg_segment_ptr 1
  .amdhsa_system_sgpr_workgroup_id_x 1
.end_amdhsa_kernel
"""
la=f"; @launch kernel=ic_kernel grid=(256,1,1) block=(512,1,1) lds=65536"
s=open('naive0.s').read()
s=s.replace("; @launch kernel=ln12_kernel",la+"\n; @launch kernel=ln12_kernel",1)
s=s.replace(".text\n",".text\n"+body,1)
s=s.replace('.section .rodata,"a"\n','.section .rodata,"a"\n'+desc,1)
print(s)
```
